```python
import torch

def _softmax(x, axis=-1):
    return torch.softmax(x, dim=axis)
def _gelu(x):
    return torch.nn.functional.gelu(x, approximate="tanh")
def _silu(x):
    return torch.nn.functional.silu(x)
def _sigmoid(x):
    return torch.sigmoid(x)
def _layernorm(x, axis=-1, eps=1e-5):
    m = x.mean(dim=axis, keepdim=True)
    v = x.var(dim=axis, keepdim=True, unbiased=False)
    return (x - m) / torch.sqrt(v + eps)
def _scatter_add(tgt, idx, src, axis=0):
    return tgt.clone().index_add_(axis, idx, src)
def _segment_sum(src, seg, n):
    out = torch.zeros((n,) + src.shape[1:], dtype=src.dtype)
    return out.index_add_(0, seg, src)
def _pad(x, pw):
    flat = tuple(v for pair in reversed(pw) for v in pair)
    return torch.nn.functional.pad(x, flat)

kernel_name = 'gated_mix__sliding_block_cached__gqa_block_cached__decode'

def setup_inputs():

    _w = (lambda a: (lambda t: t.to(torch.bfloat16) if t.is_floating_point() else t)(torch.as_tensor(a)))
    def _A_setup():
        B, Sq, D = 1, 1, 640
        Hq, Hkv, Sk, Dh = 32, 32, 4096, 192
        assert Hq % Hkv == 0, (Hq, Hkv)
        return {
            "x": _w((lambda *s: torch.randn(*s, dtype=torch.bfloat16) * 0.05)(B, Sq, D)),
            "k_cache": _w((lambda *s: torch.randn(*s, dtype=torch.bfloat16) * 6.4)(B, Hkv, Sk, Dh)),
            "v_cache": _w((lambda *s: torch.randn(*s, dtype=torch.bfloat16) * 0.05)(B, Hkv, Sk, Dh)),
            "wq": _w((lambda *s: torch.randn(*s, dtype=torch.bfloat16) * 6.4)(D, Hq * Dh) * (D ** -0.5)),
            "wo": _w((lambda *s: torch.randn(*s, dtype=torch.bfloat16) * 0.05)(Hq * Dh, D) * ((Hq * Dh) ** -0.5)),
        }
    _A_in = _A_setup()

    def _B_setup():
        B, Sq, D = 1, 1, 640
        Hq, Hkv, Sk, Dh = 32, 32, 4096, 192
        assert Hq % Hkv == 0, (Hq, Hkv)
        return {
            "x": _w((lambda *s: torch.randn(*s, dtype=torch.bfloat16) * 0.05)(B, Sq, D)),
            "k_cache": _w((lambda *s: torch.randn(*s, dtype=torch.bfloat16) * 6.4)(B, Hkv, Sk, Dh)),
            "v_cache": _w((lambda *s: torch.randn(*s, dtype=torch.bfloat16) * 0.05)(B, Hkv, Sk, Dh)),
            "wq": _w((lambda *s: torch.randn(*s, dtype=torch.bfloat16) * 6.4)(D, Hq * Dh) * (D ** -0.5)),
            "wo": _w((lambda *s: torch.randn(*s, dtype=torch.bfloat16) * 0.05)(Hq * Dh, D) * ((Hq * Dh) ** -0.5)),
        }
    _B_in = _B_setup()

    return {
        "A_x": _A_in["x"],
        "A_k_cache": _A_in["k_cache"],
        "A_v_cache": _A_in["v_cache"],
        "A_wq": _A_in["wq"],
        "A_wo": _A_in["wo"],
        "B_x": _B_in["x"],
        "B_k_cache": _B_in["k_cache"],
        "B_v_cache": _B_in["v_cache"],
        "B_wq": _B_in["wq"],
        "B_wo": _B_in["wo"],
        "gate_w": _w((lambda *s: torch.randn(*s, dtype=torch.bfloat16) * 0.05)(640) * 16.0),
    }

def reference(A_x, A_k_cache, A_v_cache, A_wq, A_wo, B_x, B_k_cache, B_v_cache, B_wq, B_wo, gate_w):
    def _A_ref(x, k_cache, v_cache, wq, wo):
        B, Sq, D = x.shape
        Hq, Dh = 32, 192
        Hkv, Sk = k_cache.shape[1], k_cache.shape[2]
        W = min(4096, max(256, Sk // 4))
        rep = Hq // Hkv
        q = (lambda x, *d: x.permute(*d))((x @ wq).reshape(B, Sq, Hq, Dh), 0, 2, 1, 3)
        k = (lambda x, n, axis: torch.repeat_interleave(x, n, dim=axis))(k_cache[:, :, Sk - W:, :], rep, axis=1)
        v = (lambda x, n, axis: torch.repeat_interleave(x, n, dim=axis))(v_cache[:, :, Sk - W:, :], rep, axis=1)
        scores = torch.einsum("bhqd,bhkd->bhqk", q, k) * (Dh ** -0.5)
        p = _softmax(scores, axis=-1)
        o = torch.einsum("bhqk,bhkd->bhqd", p, v)
        return (lambda x, *d: x.permute(*d))(o, 0, 2, 1, 3).reshape(B, Sq, Hq * Dh) @ wo

    def _B_ref(x, k_cache, v_cache, wq, wo):
        B, Sq, D = x.shape
        Hq, Dh = 32, 192
        Hkv = k_cache.shape[1]
        rep = Hq // Hkv
        q = (lambda x, *d: x.permute(*d))((x @ wq).reshape(B, Sq, Hq, Dh), 0, 2, 1, 3)
        k = (lambda x, n, axis: torch.repeat_interleave(x, n, dim=axis))(k_cache, rep, axis=1)
        v = (lambda x, n, axis: torch.repeat_interleave(x, n, dim=axis))(v_cache, rep, axis=1)
        scores = torch.einsum("bhqd,bhkd->bhqk", q, k) * (Dh ** -0.5)
        p = _softmax(scores, axis=-1)
        o = torch.einsum("bhqk,bhkd->bhqd", p, v)
        return (lambda x, *d: x.permute(*d))(o, 0, 2, 1, 3).reshape(B, Sq, Hq * Dh) @ wo

    x = A_x
    g = _sigmoid((x * gate_w).sum(-1, keepdims=True))
    a = _A_ref(x, A_k_cache, A_v_cache, A_wq, A_wo)
    b = _B_ref(x, B_k_cache, B_v_cache, B_wq, B_wo)
    return g * a + (1 - g) * b
```

```python
import re

TRANS = ("v_exp_f32", "v_log_f32", "v_rcp_f32", "v_rsq_f32", "v_sqrt_f32", "v_sin_f32", "v_cos_f32")


def _regs(tok):
    tok = tok.strip()
    if tok.startswith("-"):
        tok = tok[1:]
    if tok.startswith("|") and tok.endswith("|"):
        tok = tok[1:-1]
    m = re.fullmatch(r"([vs])(\d+)", tok)
    if m:
        return [(m.group(1), int(m.group(2)))]
    m = re.fullmatch(r"([vs])\[(\d+):(\d+)\]", tok)
    if m:
        return [(m.group(1), i) for i in range(int(m.group(2)), int(m.group(3)) + 1)]
    if tok == "vcc":
        return [("s", "vcc_lo"), ("s", "vcc_hi")]
    if tok in ("vcc_lo", "vcc_hi"):
        return [("s", tok)]
    if tok == "exec":
        return [("s", "exec_lo"), ("s", "exec_hi")]
    if tok in ("exec_lo", "exec_hi"):
        return [("s", tok)]
    return []


class Ins:
    def __init__(self, text):
        self.text = text
        self.label = None
        self.op = None
        self.vw = set(); self.vr = set()
        self.sw = set(); self.sr = set()
        self.cls = set()
        self.target = None
        self.ws = 1
        t = text.split(";")[0].strip()
        if not t:
            self.ws = 0; self.cls.add("none"); return
        if t.endswith(":"):
            self.label = t[:-1]; self.ws = 0; self.cls.add("label"); return
        if t.startswith("."):
            self.ws = 0; self.cls.add("none"); return
        parts = t.split(None, 1)
        op = parts[0]; self.op = op
        rest = parts[1] if len(parts) > 1 else ""
        ops = [x.strip() for x in rest.split(",")] if rest else []
        mods = ""
        if ops:
            last = ops[-1].split(None, 1)
            ops[-1] = last[0]
            mods = last[1] if len(last) > 1 else ""
        self.ops = ops; self.mods = mods
        base = re.sub(r"_(e32|e64|dpp|sdwa)$", "", op)
        self.base = base

        def rd(tok):
            for k, n in _regs(tok):
                (self.vr if k == "v" else self.sr).add(n)

        def wr(tok):
            for k, n in _regs(tok):
                (self.vw if k == "v" else self.sw).add(n)

        if base == "s_nop":
            self.ws = int(ops[0], 0) + 1; self.cls.add("nop"); return
        if base in ("s_branch",) or base.startswith("s_cbranch"):
            self.cls.add("branch"); self.target = ops[0]
            if base == "s_branch": self.cls.add("uncond")
            if "vcc" in base: self.sr |= {"vcc_lo", "vcc_hi"}
            if "exec" in base: self.sr |= {"exec_lo", "exec_hi"}
            return
        if base == "s_endpgm":
            self.cls |= {"uncond", "end"}; return
        if base in ("s_waitcnt", "s_barrier", "s_setprio", "s_sleep"):
            self.cls.add("misc"); return
        if base.startswith("s_"):
            self.cls.add("salu")
            if base.startswith("s_cmp") or base.startswith("s_bitcmp"):
                for o in ops: rd(o)
            else:
                wr(ops[0])
                for o in ops[1:]: rd(o)
                if "saveexec" in base:
                    self.sw |= {"exec_lo", "exec_hi"}; self.sr |= {"exec_lo", "exec_hi"}
            return
        if base.startswith("buffer_") or base.startswith("global_"):
            self.cls.add("vmem")
            if "load" in base:
                wr(ops[0])
                for o in ops[1:]: rd(o)
            else:
                self.cls.add("store")
                for o in ops: rd(o)
                if base.endswith("x3") or base.endswith("x4"):
                    self.cls.add("widestore")
                    di = 0 if base.startswith("buffer_") else 1
                    self.store_data = {n for k, n in _regs(ops[di]) if k == "v"}
            return
        if base.startswith("ds_"):
            self.cls.add("ds")
            if base.startswith("ds_read"):
                wr(ops[0])
                for o in ops[1:]: rd(o)
            else:
                for o in ops: rd(o)
                if base in ("ds_write_b96", "ds_write_b128"):
                    self.cls.add("widestore")
                    self.store_data = {n for k, n in _regs(ops[1]) if k == "v"}
            return
        if base.startswith("v_"):
            self.cls.add("valu")
            if "row_" in mods or "quad_perm" in mods or op.endswith("_dpp"):
                self.cls.add("dpp")
            if base in TRANS: self.cls.add("trans")
            if base.startswith("v_dot"): self.cls.add("dot")
            if base.startswith("v_permlane"):
                self.cls.add("permlane")
                for o in ops: rd(o); wr(o)
                return
            if base.startswith("v_cmpx"):
                self.cls.add("cmpx")
                wr(ops[0]); self.sw |= {"exec_lo", "exec_hi"}
                for o in ops[1:]: rd(o)
                return
            if base.startswith("v_cmp"):
                wr(ops[0])
                for o in ops[1:]: rd(o)
                return
            if base in ("v_readlane_b32", "v_readfirstlane_b32"):
                self.cls.add("readlane")
                wr(ops[0]); rd(ops[1])
                if len(ops) > 2:
                    rd(ops[2]); self.lanesel = {n for k, n in _regs(ops[2])}
                return
            wr(ops[0])
            for o in ops[1:]: rd(o)
            if base in ("v_dot2c_f32_bf16", "v_fmac_f32", "v_writelane_b32"):
                rd(ops[0])
            if base == "v_cndmask_b32" and len(ops) == 3:
                self.sr |= {"vcc_lo", "vcc_hi"}
            if base in ("v_addc_co_u32", "v_subb_co_u32"):
                pass
            if "dpp" in self.cls:
                pass
            return
        raise ValueError("unknown instruction: " + text)


def need(prod, cons):
    n = 0
    pv = "valu" in prod.cls
    if pv:
        vw = prod.vw
        if vw:
            if "dpp" in cons.cls and (vw & cons.vr): n = max(n, 2)
            if "dpp" in cons.cls and (vw & cons.vw): n = max(n, 2)
            if "permlane" in cons.cls and (vw & cons.vr): n = max(n, 2)
            if "readlane" in cons.cls and (vw & cons.vr): n = max(n, 1)
            if "trans" in prod.cls and (vw & (cons.vr | cons.vw)): n = max(n, 1)
            if "dot" in prod.cls and (vw & (cons.vr | cons.vw)):
                same = cons.op is not None and getattr(cons, "base", None) == prod.base
                if same:
                    srcs = set()
                    for o in cons.ops[1:3]:
                        srcs |= {x for k, x in _regs(o) if k == "v"}
                    if vw & srcs: n = max(n, 3)
                else:
                    n = max(n, 3)
        sw = prod.sw
        if sw:
            if "valu" in cons.cls and (sw & cons.sr):
                n = max(n, 2)
                if "readlane" in cons.cls and (sw & getattr(cons, "lanesel", set())): n = max(n, 4)
            if "vmem" in cons.cls and (sw & cons.sr): n = max(n, 5)
            if "ds" in cons.cls and (sw & cons.sr): n = max(n, 5)
            if sw & {"exec_lo", "exec_hi"}:
                if "dpp" in cons.cls: n = max(n, 5)
                if "permlane" in cons.cls or "readlane" in cons.cls: n = max(n, 4)
    if "widestore" in prod.cls:
        if prod.store_data & cons.vw:
            n = max(n, 2)
    return n


class Asm:
    def __init__(self):
        self.lines = []

    def e(self, text):
        for t in text.split("\n"):
            self.lines.append(t)

    def __call__(self, text):
        self.e(text)

    def finish(self, verbose=False):
        ins = [Ins(t) for t in self.lines]
        inserted = 0
        def build():
            labels = {x.label: i for i, x in enumerate(ins) if x.label}
            srcs = {}
            for i, x in enumerate(ins):
                if x.target:
                    srcs.setdefault(labels[x.target], []).append(i)
            return srcs

        def required(i, srcs):
            cons = ins[i]
            worst = 0
            stack = [(i - 1, 0, True)]
            seen = set()
            while stack:
                k, w, fall = stack.pop()
                if k < 0 or w >= 5: continue
                x = ins[k]
                if fall and "uncond" in x.cls:
                    continue
                if (k, w) in seen: continue
                seen.add((k, w))
                if x.label is not None:
                    for b in srcs.get(k, []):
                        stack.append((b, w, False))
                    stack.append((k - 1, w, True))
                    continue
                if x.op is not None:
                    nd = need(x, cons)
                    if nd > w: worst = max(worst, nd - w)
                stack.append((k - 1, w + x.ws, True))
            return worst

        changed = True
        while changed:
            changed = False
            srcs = build()
            i = 0
            while i < len(ins):
                x = ins[i]
                if x.op is not None:
                    r = required(i, srcs)
                    if r > 0:
                        ins.insert(i, Ins(f"s_nop {r-1}"))
                        inserted += 1
                        changed = True
                        srcs = build()
                        i += 1
                i += 1
        if verbose:
            print(f"; hazard pass inserted {inserted} s_nop")
        return "\n".join(x.text for x in ins) + "\n"
```

```python
import sys
sys.path.insert(0, "work")
from asmdsl import Asm

NAME = "gated_mix__sliding_block_cached__gqa_block_cached__decode"
KERNEL = NAME + "_kernel"
REF = f"cdna_kernels/{NAME}.s.ref"

X1 = 0x1000
X2ML = 0x41000
X2O = 0x42000
X3 = 0xC2000
WS_USED = 0x120000
STAMPS = 0x200000

L_QP = 0
L_OP = 5120
L_Q = 10240
L_O = 11008
L_ML = 11264
L_FL = 11328
LDS_SIZE = 12288

TAGC = 0x9E3779B9
SCALE = 0x3D93CD3A
LOG2E = 0x3FB8AA3B
SPIN = 1 << 15

KV_BYTES = 50331648
W_BYTES = 7864320


class VM:
    def __init__(self, a):
        self.a = a; self.q = []
    def issue(self, tag): self.q.append(tag)
    def wait(self, tag):
        if tag not in self.q: return
        idx = max(i for i, t in enumerate(self.q) if t == tag)
        n = len(self.q) - 1 - idx
        assert n <= 63
        self.a(f"s_waitcnt vmcnt({n})")
        self.q = self.q[idx + 1:]


def v(n, k=1):
    return f"v{n}" if k == 1 else f"v[{n}:{n+k-1}]"


def s(n, k=1):
    return f"s{n}" if k == 1 else f"s[{n}:{n+k-1}]"


DPP_FULL = "row_mask:0xf bank_mask:0xf"
X1D = f"quad_perm:[1,0,3,2] {DPP_FULL}"
X2D = f"quad_perm:[2,3,0,1] {DPP_FULL}"
HM = f"row_half_mirror {DPP_FULL}"
R8 = f"row_ror:8 {DPP_FULL}"


def gen(ne=17, no=15, R=12, debug=False, win=2, lds=LDS_SIZE):
    a = Asm(); e = a.e
    hdr = []
    for ln in open(REF).read().split("\n"):
        if ln.startswith("; @launch"):
            hdr.append(f"; @launch grid=(256,1,1) block=(384,1,1) lds={lds}")
            break
        hdr.append(ln)
    for ln in hdr: e(ln)
    e('.amdgcn_target "amdgcn-amd-amdhsa--gfx950"')
    e(".text"); e(f".globl {KERNEL}"); e(".p2align 8"); e(f".type {KERNEL},@function"); e(f"{KERNEL}:")

    sE, sW, sHEAD, sJ, sCH, sKH, sBR = 32, 33, 34, 35, 36, 37, 38
    sT0, sT1, sT2 = 39, 76, 77
    SRD_WQ, SRD_K, SRD_V, SRD_WO, SRD_X, SRD_WS = 40, 44, 48, 52, 56, 60
    sWO = 64
    sSTR = 78
    sSCALE, sL2E, sPLO, sPHI = 80, 81, 82, 83
    sTG = 84
    sCNT = 88
    sSTAMP = 90

    def srd(d, lo, size):
        e(f"s_mov_b32 {s(d)}, {s(lo)}"); e(f"s_and_b32 {s(d+1)}, {s(lo+1)}, 0xffff")
        e(f"s_mov_b32 {s(d+2)}, {size}"); e(f"s_mov_b32 {s(d+3)}, 0x20000")

    e("s_cmp_ge_u32 s2, 256"); e("s_cbranch_scc1 L_end")
    e("s_load_dwordx16 s[4:19], s[0:1], 0")
    e("s_load_dwordx8 s[20:27], s[0:1], 64")
    e("s_load_dwordx4 s[28:31], s[0:1], 96")
    if debug: e(f"s_memrealtime s[{sSTAMP}:{sSTAMP+1}]")
    e("v_lshrrev_b32 v1, 6, v0")
    e("v_and_b32 v0, 63, v0")
    e(f"s_lshr_b32 {s(sHEAD)}, s2, 3")
    e(f"v_readfirstlane_b32 {s(sW)}, v1")
    e(f"s_and_b32 {s(sJ)}, s2, 7")
    e(f"s_and_b32 {s(sCH)}, s2, 1")
    e(f"s_lshr_b32 {s(sKH)}, {s(sJ)}, 1"); e(f"s_and_b32 {s(sKH)}, {s(sKH)}, 1")
    e(f"s_lshr_b32 {s(sBR)}, {s(sJ)}, 2")
    e(f"s_cmp_eq_u32 {s(sW)}, 5"); e("s_cbranch_scc1 L_agent")

    vK, vV, vWQ, vWO, vX3, vQP, vQ, vO, vML, vFL, vTag = 1, 2, 3, 4, 5, 6, 7, 8, 9, 10, 11
    vXR, vXLO, vXHI = 12, 14, 15
    ACC, QR, SS, PLO = 16, 40, 52, 69
    vM, vL = 86, 87
    vT = 88
    OPR, AC8 = 96, 104
    RING = 112
    assert RING + 12 * R <= 256
    vRG, vC = 94, 95

    e(f"v_lshrrev_b32 {v(vRG)}, 3, v0"); e(f"v_and_b32 {v(vC)}, 7, v0")
    e(f"s_and_b32 {s(sT0)}, {s(sJ)}, 3"); e(f"s_mul_i32 {s(sT0)}, {s(sT0)}, 160")
    e(f"s_lshl_b32 {s(sT1)}, {s(sW)}, 5"); e(f"s_add_u32 {s(sT0)}, {s(sT0)}, {s(sT1)}")
    e(f"v_lshlrev_b32 {v(vT)}, 2, {v(vRG)}"); e(f"v_add_u32 {v(vT)}, {s(sT0)}, {v(vT)}")
    e(f"v_lshlrev_b32 {v(vT+1)}, 1, {v(vT)}")
    e(f"v_mul_u32_u24 {v(vWQ)}, 0x3000, {v(vT)}")
    e(f"v_lshlrev_b32 {v(vT+2)}, 4, {v(vC)}")
    e(f"s_mul_i32 {s(sT1)}, {s(sHEAD)}, 384")
    e(f"v_add_u32 {v(vWQ)}, {v(vWQ)}, {v(vT+2)}"); e(f"v_add_u32 {v(vWQ)}, {s(sT1)}, {v(vWQ)}")
    e(f"s_lshr_b32 {s(sT0)}, {s(sJ)}, 1"); e(f"s_mul_i32 {s(sT0)}, {s(sT0)}, {ne+no}")
    e(f"s_mul_i32 {s(sT1)}, {s(sCH)}, {ne}"); e(f"s_add_u32 {s(sT0)}, {s(sT0)}, {s(sT1)}")
    e(f"s_lshl_b32 {s(sT1)}, {s(sT0)}, 2"); e(f"s_add_u32 {s(sT1)}, {s(sT1)}, {s(sW)}"); e(f"s_sub_u32 {s(sT1)}, {s(sT1)}, 1")
    e(f"s_add_u32 {s(sT0)}, {s(sT0)}, 384")
    e(f"s_mov_b32 {s(sSTR)}, 12288")
    e(f"s_cmp_eq_u32 {s(sW)}, 0")
    e(f"s_cselect_b32 {s(sT0)}, {s(sT0)}, {s(sT1)}")
    e(f"s_cselect_b32 {s(sSTR)}, 3072, {s(sSTR)}")
    e(f"s_mul_i32 {s(sT0)}, {s(sT0)}, 3072"); e(f"s_mul_i32 {s(sT1)}, {s(sHEAD)}, 1572864"); e(f"s_add_u32 {s(sT0)}, {s(sT0)}, {s(sT1)}")
    e(f"v_mul_u32_u24 {v(vK)}, 384, {v(vRG)}"); e(f"v_add_u32 {v(vK)}, {v(vK)}, {v(vT+2)}"); e(f"v_add_u32 {v(vK)}, {s(sT0)}, {v(vK)}")
    e("s_waitcnt lgkmcnt(0)")
    e(f"s_load_dword {s(sE)}, s[30:31], 0")
    srd(SRD_X, 4, 1280)
    e(f"s_cmp_eq_u32 {s(sBR)}, 0")
    e("s_cselect_b32 s10, s10, s20"); e("s_cselect_b32 s11, s11, s21")
    e("s_cselect_b32 s12, s12, s22"); e("s_cselect_b32 s13, s13, s23")
    srd(SRD_WQ, 10, W_BYTES)
    e(f"s_and_b32 {s(sT0)}, s2, 1"); e(f"s_cmp_eq_u32 {s(sT0)}, 1"); e("s_cbranch_scc1 L_stream_odd")

    def streamer(n, tagname):
        vm = VM(a)
        nitems = 4 + n + n + 4
        K0i, V0i, O0i = 4, 4 + n, 4 + 2 * n
        st = {"issued": 0}
        stamp_i = [1]

        def stamp():
            if debug and stamp_i[0] < 6:
                e(f"s_memrealtime s[{sSTAMP+2*stamp_i[0]}:{sSTAMP+2*stamp_i[0]+1}]")
                stamp_i[0] += 1

        def slot(idx): return RING + 12 * (idx % R)

        def issue(idx):
            assert idx == st["issued"]
            b = slot(idx)
            if idx < 4:
                for o in range(3):
                    e(f"buffer_load_dwordx4 {v(b+4*o,4)}, {v(vWQ)}, {s(SRD_WQ,4)}, 0 offen offset:{128*o} nt"); vm.issue(idx)
                if idx < 3: e(f"v_add_u32 {v(vWQ)}, 0x3000, {v(vWQ)}")
            elif idx < V0i:
                for o in range(3):
                    e(f"buffer_load_dwordx4 {v(b+4*o,4)}, {v(vK)}, {s(SRD_K,4)}, 0 offen offset:{128*o} nt"); vm.issue(idx)
                if idx < V0i - 1: e(f"v_add_u32 {v(vK)}, {s(sSTR)}, {v(vK)}")
            elif idx < O0i:
                for o in range(3):
                    e(f"buffer_load_dwordx4 {v(b+4*o,4)}, {v(vV)}, {s(SRD_V,4)}, 0 offen offset:{128*o} nt"); vm.issue(idx)
                if idx < O0i - 1: e(f"v_add_u32 {v(vV)}, {s(sSTR)}, {v(vV)}")
            else:
                m = idx - O0i
                for o in range(3):
                    e(f"v_add_u32 {v(vT+o)}, {s(sWO+3*m+o)}, {v(vWO)}")
                for o in range(3):
                    e(f"buffer_load_dwordx4 {v(b+4*o,4)}, {v(vT+o)}, {s(SRD_WO,4)}, 0 offen nt"); vm.issue(idx)
            st["issued"] += 1

        def issue_upto(k):
            while st["issued"] <= min(k, nitems - 1):
                issue(st["issued"])

        def consume_wq(g):
            b = slot(g); src = vXR + g // 2
            if g % 2 == 0:
                e(f"v_and_b32 {v(vXLO)}, 0xffff, {v(src)}"); e(f"v_lshlrev_b32 {v(vXHI)}, 16, {v(src)}")
            else:
                e(f"v_lshrrev_b32 {v(vXLO)}, 16, {v(src)}"); e(f"v_and_b32 {v(vXHI)}, 0xffff0000, {v(src)}")
            for d in range(12):
                e(f"v_dot2c_f32_bf16 {v(ACC+2*d)}, {v(b+d)}, {v(vXLO)}")
                e(f"v_dot2c_f32_bf16 {v(ACC+2*d+1)}, {v(b+d)}, {v(vXHI)}")

        def reduce_scatter24():
            for k in range(12): e(f"v_permlane32_swap_b32 {v(ACC+k)}, {v(ACC+k+12)}")
            for k in range(12): e(f"v_add_f32 {v(ACC+k)}, {v(ACC+k)}, {v(ACC+k+12)}")
            for k in range(6): e(f"v_permlane16_swap_b32 {v(ACC+k)}, {v(ACC+k+6)}")
            for k in range(6): e(f"v_add_f32 {v(ACC+k)}, {v(ACC+k)}, {v(ACC+k+6)}")
            for k in range(3): e(f"v_add_f32_dpp {v(ACC+k)}, {v(ACC+k)}, {v(ACC+k)} row_ror:8 row_mask:0xf bank_mask:0x3")
            for k in range(3): e(f"v_add_f32_dpp {v(ACC+k)}, {v(ACC+k+3)}, {v(ACC+k+3)} row_ror:8 row_mask:0xf bank_mask:0xc")

        def signal(phase):
            e("s_waitcnt lgkmcnt(0)")
            e(f"v_mov_b32 {v(vT+7)}, {phase}")
            e("s_mov_b64 exec, 1")
            e(f"ds_write_b32 {v(vFL)}, {v(vT+7)}")
            e("s_mov_b64 exec, -1")

        def fin_ops(g):
            r = SS + g
            return [
                f"v_add_f32_dpp {v(r)}, {v(r)}, {v(r)} {X1D}",
                f"v_add_f32_dpp {v(r)}, {v(r)}, {v(r)} {X2D}",
                f"v_add_f32_dpp {v(r)}, {v(r)}, {v(r)} {HM}",
                f"v_cvt_pk_bf16_f32 {v(r)}, 0, {v(r)}",
                f"v_mul_f32 {v(r)}, {s(sSCALE)}, {v(r)}",
                f"v_cvt_pk_bf16_f32 {v(r)}, 0, {v(r)}",
                f"v_max_f32 {v(vM)}, {v(vM)}, {v(r)}",
            ]

        def consume_k(g):
            b = slot(K0i + g)
            fin = fin_ops(g - 1) if g > 0 else []
            pos = {2: 0, 4: 1, 6: 2, 7: 3, 8: 4, 9: 5, 10: 6}
            for d in range(12):
                e(f"v_dot2c_f32_bf16 {v(SS+g)}, {v(b+d)}, {v(QR+d)}")
                if fin and d in pos: e(fin[pos[d]])

        def consume_v(g):
            b = slot(V0i + g)
            for d in range(12):
                e(f"v_dot2c_f32_bf16 {v(ACC+2*d)}, {v(b+d)}, {v(PLO+g)}")
                e(f"v_dot2c_f32_bf16 {v(ACC+2*d+1)}, {v(b+d)}, {v(SS+g)}")

        e(f"buffer_load_dwordx2 {v(vXR,2)}, {v(vT+1)}, {s(SRD_X,4)}, 0 offen"); vm.issue("x")
        issue(0); issue(1)
        e("s_cmp_eq_u32 s33, 0")
        e("s_cselect_b32 s6, s6, s16"); e("s_cselect_b32 s7, s7, s17")
        e("s_cselect_b32 s8, s8, s18"); e("s_cselect_b32 s9, s9, s19")
        e(f"s_cselect_b32 {s(sT0)}, 0, 1")
        srd(SRD_K, 6, KV_BYTES); srd(SRD_V, 8, KV_BYTES); srd(SRD_WO, 12, W_BYTES); srd(SRD_WS, 30, WS_USED)
        e(f"v_mov_b32 {v(vV)}, {v(vK)}")
        e(f"s_mul_i32 {s(sT0)}, {s(sT0)}, 384"); e(f"s_add_u32 {s(sT0)}, {s(sT0)}, {L_Q}")
        e(f"v_mul_u32_u24 {v(vQ)}, 48, {v(vC)}"); e(f"v_add_u32 {v(vQ)}, {s(sT0)}, {v(vQ)}")
        e(f"s_lshl_b32 {s(sT0)}, {s(sW)}, 10"); e(f"v_lshlrev_b32 {v(vQP)}, 4, v0"); e(f"v_add_u32 {v(vQP)}, {s(sT0)}, {v(vQP)}")
        e(f"v_lshlrev_b32 {v(vO)}, 5, {v(vRG)}"); e(f"v_add_u32 {v(vO)}, {L_O}, {v(vO)}")
        e(f"s_lshl_b32 {s(sT0)}, {s(sW)}, 3"); e(f"s_add_u32 {s(sT0)}, {s(sT0)}, {L_ML}"); e(f"v_mov_b32 {v(vML)}, {s(sT0)}")
        e(f"s_lshl_b32 {s(sT0)}, {s(sW)}, 2"); e(f"s_add_u32 {s(sT0)}, {s(sT0)}, {L_FL}"); e(f"v_mov_b32 {v(vFL)}, {s(sT0)}")
        e(f"s_mul_i32 {s(sT0)}, {s(sHEAD)}, {192*1280}"); e(f"s_mul_i32 {s(sT1)}, {s(sCH)}, 640"); e(f"s_add_u32 {s(sT0)}, {s(sT0)}, {s(sT1)}")
        e(f"s_lshl_b32 {s(sT1)}, {s(sW)}, 7"); e(f"s_add_u32 {s(sT0)}, {s(sT0)}, {s(sT1)}")
        e(f"v_mul_u32_u24 {v(vWO)}, 0x2800, {v(vRG)}"); e(f"v_lshlrev_b32 {v(vT+2)}, 4, {v(vC)}")
        e(f"v_add_u32 {v(vWO)}, {v(vWO)}, {v(vT+2)}"); e(f"v_add_u32 {v(vWO)}, {s(sT0)}, {v(vWO)}")
        e(f"s_cmp_eq_u32 {s(sKH)}, 0")
        for i in range(12):
            r0 = 64 * (i >> 3) + (i & 7); vv = 12 + i; r1 = 64 * (vv >> 3) + (vv & 7)
            e(f"s_mov_b32 {s(sWO+i)}, {r1*1280}")
            e(f"s_cselect_b32 {s(sWO+i)}, {r0*1280}, {s(sWO+i)}")
        e(f"s_lshl_b32 {s(sT0)}, {s(sBR)}, 6"); e(f"s_lshl_b32 {s(sT1)}, {s(sHEAD)}, 1"); e(f"s_add_u32 {s(sT0)}, {s(sT0)}, {s(sT1)}")
        e(f"s_add_u32 {s(sT0)}, {s(sT0)}, {s(sKH)}"); e(f"s_mul_i32 {s(sT0)}, {s(sT0)}, 2560")
        e(f"s_mul_i32 {s(sT1)}, {s(sCH)}, 1280"); e(f"s_add_u32 {s(sT0)}, {s(sT0)}, {s(sT1)}")
        e(f"s_lshl_b32 {s(sT1)}, {s(sW)}, 8"); e(f"s_add_u32 {s(sT0)}, {s(sT0)}, {s(sT1)}"); e(f"s_add_u32 {s(sT0)}, {s(sT0)}, {X3}")
        e(f"v_lshlrev_b32 {v(vX3)}, 5, {v(vC)}"); e(f"v_lshrrev_b32 {v(vT+2)}, 5, v0"); e(f"v_lshlrev_b32 {v(vT+2)}, 4, {v(vT+2)}")
        e(f"v_add_u32 {v(vX3)}, {v(vX3)}, {v(vT+2)}"); e(f"v_add_u32 {v(vX3)}, {s(sT0)}, {v(vX3)}")
        e(f"s_mov_b32 {s(sSCALE)}, {SCALE:#x}"); e(f"s_mov_b32 {s(sL2E)}, {LOG2E:#x}")
        e(f"s_mov_b32 {s(sPLO)}, 0x05040100"); e(f"s_mov_b32 {s(sPHI)}, 0x07060302")
        for k in range(4): e(f"s_mov_b32 {s(sTG+k)}, {0x07060500 | k:#x}")
        for k in range(24): e(f"v_mov_b32 {v(ACC+k)}, 0")
        for k in range(n): e(f"v_mov_b32 {v(SS+k)}, 0")
        for k in range(8): e(f"v_mov_b32 {v(AC8+k)}, 0")
        e(f"v_mov_b32 {v(vM)}, 0xff800000")
        e("s_barrier")
        vm.wait("x")
        for g in range(4):
            vm.wait(g); issue_upto(g + win); consume_wq(g)
        stamp()
        reduce_scatter24()
        e(f"ds_write_b96 {v(vQP)}, {v(ACC,3)} offset:{L_QP}")
        signal(1)
        for k in range(24): e(f"v_mov_b32 {v(ACC+k)}, 0")
        last_fill = min(K0i + R - 1, nitems - 1)
        while st["issued"] <= last_fill:
            vm.wait(st["issued"] - win); issue(st["issued"])
        e("s_barrier")
        stamp()
        for k in range(3): e(f"ds_read_b128 {v(QR+4*k,4)}, {v(vQ)} offset:{16*k}")
        e("s_waitcnt lgkmcnt(0)")
        for g in range(n):
            idx = K0i + g
            vm.wait(idx)
            if g < R:
                consume_k(g)
                if g < win: issue_upto(idx + R)
            else:
                issue_upto(idx + win); consume_k(g)
        for op in fin_ops(n - 1): e(op)
        stamp()
        e(f"v_max_f32_dpp {v(vM)}, {v(vM)}, {v(vM)} {R8}")
        e(f"v_mov_b32 {v(vT)}, {v(vM)}"); e(f"v_permlane16_swap_b32 {v(vM)}, {v(vT)}"); e(f"v_max_f32 {v(vM)}, {v(vM)}, {v(vT)}")
        e(f"v_mov_b32 {v(vT)}, {v(vM)}"); e(f"v_permlane32_swap_b32 {v(vM)}, {v(vT)}"); e(f"v_max_f32 {v(vM)}, {v(vM)}, {v(vT)}")
        e(f"v_mul_f32 {v(vT+1)}, {s(sL2E)}, {v(vM)}")
        e(f"v_mov_b32 {v(vL)}, 0")
        for g0 in range(0, n, 4):
            gs = list(range(g0, min(g0 + 4, n)))
            for g in gs: e(f"v_fma_f32 {v(SS+g)}, {v(SS+g)}, {s(sL2E)}, -{v(vT+1)}")
            for g in gs: e(f"v_exp_f32 {v(SS+g)}, {v(SS+g)}")
            for g in gs: e(f"v_cvt_pk_bf16_f32 {v(PLO+g)}, {v(SS+g)}, 0")
            for g in gs: e(f"v_lshlrev_b32 {v(SS+g)}, 16, {v(PLO+g)}")
            for g in gs: e(f"v_add_f32 {v(vL)}, {v(vL)}, {v(SS+g)}")
        e(f"v_add_f32_dpp {v(vL)}, {v(vL)}, {v(vL)} {R8}")
        e(f"v_mov_b32 {v(vT)}, {v(vL)}"); e(f"v_permlane16_swap_b32 {v(vL)}, {v(vT)}"); e(f"v_add_f32 {v(vL)}, {v(vL)}, {v(vT)}")
        e(f"v_mov_b32 {v(vT)}, {v(vL)}"); e(f"v_permlane32_swap_b32 {v(vL)}, {v(vT)}"); e(f"v_add_f32 {v(vL)}, {v(vL)}, {v(vT)}")
        e("s_mov_b64 exec, 1")
        e(f"ds_write_b64 {v(vML)}, {v(vM,2)}")
        e("s_mov_b64 exec, -1")
        signal(2)
        for g in range(n):
            idx = V0i + g
            vm.wait(idx); issue_upto(idx + win); consume_v(g)
        stamp()
        reduce_scatter24()
        e(f"ds_write_b96 {v(vQP)}, {v(ACC,3)} offset:{L_OP}")
        signal(3)
        used = {(O0i + m) % R for m in range(4)}
        free = [k for k in range(R) if k not in used][:4]
        assert len(free) == 4
        pout = [RING + 12 * k + d for k in free for d in range(12)]

        def wrow(i):
            return slot(O0i + i // 3) + 4 * (i % 3)

        def perms(p):
            ra, rb = wrow(2 * p), wrow(2 * p + 1)
            for k in range(4):
                e(f"v_perm_b32 {v(pout[8*p+2*k])}, {v(rb+k)}, {v(ra+k)}, {s(sPLO)}")
                e(f"v_perm_b32 {v(pout[8*p+2*k+1])}, {v(rb+k)}, {v(ra+k)}, {s(sPHI)}")

        ready = {0: [0], 1: [1, 2], 2: [3], 3: [4, 5]}
        for m in range(4):
            vm.wait(O0i + m); issue_upto(O0i + m + win)
            for p in ready[m]: perms(p)
        e(f"s_waitcnt lgkmcnt(0)")
        e(f"s_add_u32 {s(sE)}, {s(sE)}, {TAGC:#x}")
        e(f"v_mov_b32 {v(vTag)}, {s(sE)}")
        e("s_barrier")
        stamp()
        e(f"ds_read_b128 {v(OPR,4)}, {v(vO)}"); e(f"ds_read_b64 {v(OPR+4,2)}, {v(vO)} offset:16")
        e("s_waitcnt lgkmcnt(0)")
        for p in range(6):
            for k in range(4):
                e(f"v_dot2c_f32_bf16 {v(AC8+2*k)}, {v(pout[8*p+2*k])}, {v(OPR+p)}")
                e(f"v_dot2c_f32_bf16 {v(AC8+2*k+1)}, {v(pout[8*p+2*k+1])}, {v(OPR+p)}")
        for k in range(4): e(f"v_permlane32_swap_b32 {v(AC8+k)}, {v(AC8+k+4)}")
        for k in range(4): e(f"v_add_f32 {v(AC8+k)}, {v(AC8+k)}, {v(AC8+k+4)}")
        for k in range(4): e(f"v_mov_b32 {v(AC8+k+4)}, {v(AC8+k)}")
        for k in range(4): e(f"v_permlane16_swap_b32 {v(AC8+k)}, {v(AC8+k+4)}")
        for k in range(4): e(f"v_add_f32 {v(AC8+k)}, {v(AC8+k)}, {v(AC8+k+4)}")
        for k in range(4): e(f"v_add_f32_dpp {v(AC8+k)}, {v(AC8+k)}, {v(AC8+k)} {R8}")
        for k in range(4): e(f"v_perm_b32 {v(AC8+4+k)}, {v(AC8+k)}, {v(vTag)}, {s(sTG+k)}")
        e("s_mov_b32 exec_lo, 0xff"); e("s_mov_b32 exec_hi, 0xff")
        e(f"buffer_store_dwordx4 {v(AC8+4,4)}, {v(vX3)}, {s(SRD_WS,4)}, 0 offen sc1")
        e("s_mov_b64 exec, -1")
        if debug:
            e("s_waitcnt vmcnt(0)")
            e(f"s_branch L_dbg_stream")
        else:
            e("s_endpgm")

    e("L_stream_even:")
    streamer(ne, "e")
    e("L_stream_odd:")
    streamer(no, "o")

    if debug:
        e("L_dbg_stream:")
        e(f"s_waitcnt lgkmcnt(0)")
        e(f"s_lshl_b32 {s(sT0)}, s2, 10"); e(f"s_lshl_b32 {s(sT1)}, {s(sW)}, 6"); e(f"s_add_u32 {s(sT0)}, {s(sT0)}, {s(sT1)}")
        e(f"s_add_u32 {s(sT0)}, {s(sT0)}, {STAMPS}")
        e(f"s_mov_b32 {s(SRD_WS+2)}, 0x400000")
        e(f"v_mov_b32 v1, {s(sT0)}")
        e("s_mov_b64 exec, 1")
        for k in range(6):
            e(f"v_mov_b32 v2, {s(sSTAMP+2*k)}"); e(f"v_mov_b32 v3, {s(sSTAMP+2*k+1)}")
            e(f"buffer_store_dwordx2 v[2:3], v1, {s(SRD_WS,4)}, 0 offen offset:{8*k}"); e("s_nop 1")
        e("s_waitcnt vmcnt(0)")
        e("s_endpgm")

    SRD_GW, SRD_OUT = 40, 44
    aST = [64, 66, 68, 70, 72, 74, 48, 50, 52, 54, 92, 94, 96, 98, 100]
    ast = [0]

    def astamp():
        if debug:
            e(f"s_memrealtime s[{aST[ast[0]]}:{aST[ast[0]]+1}]"); ast[0] += 1

    gTag, gFA, gZ, gG, gG1 = 1, 2, 3, 4, 5
    gRG, gC = 6, 7
    gA = 8
    gW = 16
    gML = 22
    gT = 32
    gD = 64

    def lds_wait(phase, lab):
        e(f"s_mov_b32 {s(sCNT)}, {SPIN*8}")
        e(f"{lab}:")
        e(f"ds_read_b32 {v(gT)}, {v(gFA)}")
        e("s_waitcnt lgkmcnt(0)")
        e(f"v_cmp_le_u32 vcc, {phase}, {v(gT)}")
        e("s_cmp_eq_u64 vcc, -1"); e(f"s_cbranch_scc1 {lab}_ok")
        e(f"s_sub_u32 {s(sCNT)}, {s(sCNT)}, 1"); e(f"s_cbranch_scc0 {lab}")
        e(f"{lab}_ok:")

    def poll(lab, loads, checks):
        e(f"s_mov_b32 {s(sCNT)}, {SPIN}")
        e(f"{lab}:")
        for l in loads: e(l)
        e("s_waitcnt vmcnt(0)")
        e("s_mov_b64 s[78:79], -1")
        for c in checks:
            c(); e("s_and_b64 s[78:79], s[78:79], vcc")
        e("s_cmp_eq_u64 s[78:79], -1"); e(f"s_cbranch_scc1 {lab}_ok")
        e(f"s_sub_u32 {s(sCNT)}, {s(sCNT)}, 1"); e(f"s_cbranch_scc0 {lab}")
        e(f"{lab}_ok:")

    def tagchk(r):
        return lambda: e(f"v_cmp_eq_u32 vcc, {v(r)}, {v(gTag)}")

    e("L_agent:")
    e("s_setprio 3")
    if debug:
        for r in aST: e(f"s_mov_b64 s[{r}:{r+1}], 0")
    e(f"v_and_b32 {v(gC)}, 7, v0"); e(f"v_lshrrev_b32 {v(gRG)}, 3, v0")
    e(f"v_lshlrev_b32 {v(gFA)}, 2, {v(gC)}"); e(f"v_add_u32 {v(gFA)}, {L_FL}, {v(gFA)}")
    e(f"v_cmp_lt_u32 vcc, 4, {v(gC)}"); e(f"v_mov_b32 {v(gT)}, 0"); e(f"v_mov_b32 {v(gT+1)}, 64")
    e(f"v_cndmask_b32 {v(gT)}, {v(gT)}, {v(gT+1)}, vcc")
    e(f"ds_write_b32 {v(gFA)}, {v(gT)}")
    e("s_waitcnt lgkmcnt(0)")
    e(f"s_load_dword {s(sE)}, s[30:31], 0")
    e("s_barrier")
    srd(SRD_X, 4, 1280); srd(SRD_GW, 24, 1280); srd(SRD_OUT, 26, 1280); srd(SRD_WS, 30, WS_USED)
    e(f"s_mov_b32 {s(sL2E)}, {LOG2E:#x}")
    e(f"v_lshlrev_b32 {v(gA)}, 2, v0")
    for k in range(5): e(f"buffer_load_dword {v(gD+k)}, {v(gA)}, {s(SRD_X,4)}, 0 offen offset:{256*k}")
    for k in range(5): e(f"buffer_load_dword {v(gD+5+k)}, {v(gA)}, {s(SRD_GW,4)}, 0 offen offset:{256*k}")
    e(f"v_mov_b32 {v(gZ)}, 0"); e(f"v_mov_b32 {v(gT+6)}, 0x3f803f80")
    e("s_waitcnt vmcnt(0) lgkmcnt(0)")
    e(f"s_add_u32 {s(sE)}, {s(sE)}, {TAGC:#x}"); e(f"v_mov_b32 {v(gTag)}, {s(sE)}")
    for k in range(5):
        x, g = gD + k, gD + 5 + k
        e(f"v_lshlrev_b32 {v(gT)}, 16, {v(x)}"); e(f"v_and_b32 {v(gT+1)}, 0xffff0000, {v(x)}")
        e(f"v_lshlrev_b32 {v(gT+2)}, 16, {v(g)}"); e(f"v_and_b32 {v(gT+3)}, 0xffff0000, {v(g)}")
        e(f"v_mul_f32 {v(gT)}, {v(gT)}, {v(gT+2)}"); e(f"v_mul_f32 {v(gT+1)}, {v(gT+1)}, {v(gT+3)}")
        e(f"v_cvt_pk_bf16_f32 {v(gT+4)}, {v(gT)}, {v(gT+1)}")
        e(f"v_dot2c_f32_bf16 {v(gZ)}, {v(gT+4)}, {v(gT+6)}")
    for m in (X1D, X2D, HM, R8): e(f"v_add_f32_dpp {v(gZ)}, {v(gZ)}, {v(gZ)} {m}")
    e(f"v_mov_b32 {v(gT)}, {v(gZ)}"); e(f"v_permlane16_swap_b32 {v(gZ)}, {v(gT)}"); e(f"v_add_f32 {v(gZ)}, {v(gZ)}, {v(gT)}")
    e(f"v_mov_b32 {v(gT)}, {v(gZ)}"); e(f"v_permlane32_swap_b32 {v(gZ)}, {v(gT)}"); e(f"v_add_f32 {v(gZ)}, {v(gZ)}, {v(gT)}")
    e(f"v_cvt_pk_bf16_f32 {v(gZ)}, 0, {v(gZ)}")
    e(f"v_mul_f32 {v(gT)}, {s(sL2E)}, {v(gZ)}"); e(f"v_sub_f32 {v(gT)}, 0, {v(gT)}"); e(f"v_exp_f32 {v(gT)}, {v(gT)}")
    e(f"v_add_f32 {v(gT)}, 1.0, {v(gT)}"); e(f"v_rcp_f32 {v(gT)}, {v(gT)}")
    e(f"v_cvt_pk_bf16_f32 {v(gG)}, 0, {v(gT)}")
    e(f"v_sub_f32 {v(gG1)}, 1.0, {v(gG)}"); e(f"v_cvt_pk_bf16_f32 {v(gG1)}, 0, {v(gG1)}")
    astamp()
    e(f"v_lshlrev_b32 {v(gA)}, 4, v0")
    e(f"s_lshl_b32 {s(sT0)}, {s(sHEAD)}, 13"); e(f"s_add_u32 {s(sT0)}, {s(sT0)}, {X1}")
    e(f"v_add_u32 {v(gA+1)}, {s(sT0)}, {v(gA)}")
    e(f"v_add_u32 {v(gA+2)}, 0x1000, {v(gA+1)}")
    e(f"s_lshl_b32 {s(sT1)}, {s(sJ)}, 10"); e(f"v_add_u32 {v(gA+3)}, {s(sT1)}, {v(gA+1)}")
    lds_wait(1, "L_a_q")
    astamp()
    for w in range(5): e(f"ds_read_b96 {v(gT+4*w,3)}, {v(gA)} offset:{L_QP+1024*w}")
    e("s_waitcnt lgkmcnt(0)")
    for t in range(3):
        e(f"v_add_f32 {v(gT+t)}, {v(gT+t)}, {v(gT+4+t)}"); e(f"v_add_f32 {v(gT+8+t)}, {v(gT+8+t)}, {v(gT+12+t)}")
    for t in range(3): e(f"v_add_f32 {v(gT+t)}, {v(gT+t)}, {v(gT+16+t)}")
    for t in range(3): e(f"v_add_f32 {v(gT+t)}, {v(gT+t)}, {v(gT+8+t)}")
    e(f"v_mov_b32 {v(gT+3)}, {v(gTag)}")
    e(f"buffer_store_dwordx4 {v(gT,4)}, {v(gA+3)}, {s(SRD_WS,4)}, 0 offen sc1")
    loads = [f"buffer_load_dwordx4 {v(gD+4*i,4)}, {v(gA+1+(i>>2))}, {s(SRD_WS,4)}, 0 offen offset:{1024*(i&3)} sc1" for i in range(8)]
    poll("L_a_x1", loads, [tagchk(gD + 4 * i + 3) for i in range(8)])
    astamp()
    for br in range(2):
        b = gD + 16 * br
        for t in range(3):
            e(f"v_add_f32 {v(b+t)}, {v(b+t)}, {v(b+4+t)}"); e(f"v_add_f32 {v(b+8+t)}, {v(b+8+t)}, {v(b+12+t)}")
        for t in range(3): e(f"v_add_f32 {v(b+t)}, {v(b+t)}, {v(b+8+t)}")
    e(f"v_mul_u32_u24 {v(gA+4)}, 48, {v(gC)}"); e(f"v_mul_u32_u24 {v(gA+5)}, 6, {v(gRG)}"); e(f"v_add_u32 {v(gA+4)}, {v(gA+4)}, {v(gA+5)}")
    for br in range(2):
        b = gD + 16 * br
        e(f"v_cvt_pk_bf16_f32 {v(gT+2*br)}, {v(b)}, {v(b+1)}"); e(f"v_cvt_pk_bf16_f32 {v(gT+2*br+1)}, {v(b+2)}, {v(b+2)}")
    for br in range(2):
        o = L_Q + 384 * br
        e(f"ds_write_b16 {v(gA+4)}, {v(gT+2*br)} offset:{o}")
        e(f"ds_write_b16_d16_hi {v(gA+4)}, {v(gT+2*br)} offset:{o+2}")
        e(f"ds_write_b16 {v(gA+4)}, {v(gT+2*br+1)} offset:{o+4}")
    e("s_waitcnt lgkmcnt(0)")
    e("s_barrier")
    astamp()
    e(f"s_lshl_b32 {s(sT0)}, {s(sHEAD)}, 7"); e(f"s_add_u32 {s(sT0)}, {s(sT0)}, {X2ML}")
    e(f"v_lshlrev_b32 {v(gA+1)}, 4, {v(gC)}"); e(f"v_add_u32 {v(gA+1)}, {s(sT0)}, {v(gA+1)}")
    e(f"s_lshl_b32 {s(sT1)}, {s(sJ)}, 4"); e(f"s_add_u32 {s(sT0)}, {s(sT0)}, {s(sT1)}"); e(f"v_mov_b32 {v(gA+2)}, {s(sT0)}")
    e(f"v_mov_b32 {v(gA+3)}, 0")
    lds_wait(2, "L_a_ml")
    astamp()
    for w in range(5): e(f"ds_read_b64 {v(gML+2*w,2)}, {v(gA+3)} offset:{L_ML+8*w}")
    e("s_waitcnt lgkmcnt(0)")
    mreg = lambda w: gML + 2 * w
    lreg = lambda w: gML + 2 * w + 1
    e(f"v_max3_f32 {v(gT)}, {v(mreg(1))}, {v(mreg(2))}, {v(mreg(3))}"); e(f"v_max_f32 {v(gT)}, {v(gT)}, {v(mreg(4))}")
    for w in range(1, 5): e(f"v_sub_f32 {v(gT+w)}, {v(mreg(w))}, {v(gT)}")
    for w in range(1, 5): e(f"v_mul_f32 {v(gT+w)}, {s(sL2E)}, {v(gT+w)}")
    for w in range(1, 5): e(f"v_exp_f32 {v(gT+w)}, {v(gT+w)}")
    e(f"v_mul_f32 {v(gT+10)}, {v(gT+1)}, {v(lreg(1))}")
    for w in range(2, 5): e(f"v_fma_f32 {v(gT+10)}, {v(gT+w)}, {v(lreg(w))}, {v(gT+10)}")
    e(f"v_lshrrev_b32 {v(gT+8)}, 16, {v(mreg(0))}"); e(f"v_and_b32 {v(gT+5)}, 0xffff0000, {v(gT)}"); e(f"v_or_b32 {v(gT+8)}, {v(gT+8)}, {v(gT+5)}")
    e(f"v_mov_b32 {v(gT+9)}, {v(lreg(0))}"); e(f"v_mov_b32 {v(gT+11)}, {v(gTag)}")
    e("s_mov_b64 exec, 1")
    e(f"buffer_store_dwordx4 {v(gT+8,4)}, {v(gA+2)}, {s(SRD_WS,4)}, 0 offen sc1")
    e("s_mov_b64 exec, -1")
    poll("L_a_x2ml", [f"buffer_load_dwordx4 {v(gD,4)}, {v(gA+1)}, {s(SRD_WS,4)}, 0 offen sc1"], [tagchk(gD + 3)])
    astamp()
    e(f"v_lshlrev_b32 {v(gT)}, 16, {v(gD)}"); e(f"v_and_b32 {v(gT+1)}, 0xffff0000, {v(gD)}")
    e(f"v_mov_b32 {v(gT+2)}, {v(gT)}"); e(f"v_mov_b32 {v(gT+3)}, {v(gT+1)}")
    for m in (X1D, X2D, HM):
        e(f"v_max_f32_dpp {v(gT+2)}, {v(gT+2)}, {v(gT+2)} {m}"); e(f"v_max_f32_dpp {v(gT+3)}, {v(gT+3)}, {v(gT+3)} {m}")
    e(f"v_sub_f32 {v(gT)}, {v(gT)}, {v(gT+2)}"); e(f"v_sub_f32 {v(gT+1)}, {v(gT+1)}, {v(gT+3)}")
    e(f"v_mul_f32 {v(gT)}, {s(sL2E)}, {v(gT)}"); e(f"v_mul_f32 {v(gT+1)}, {s(sL2E)}, {v(gT+1)}")
    e(f"v_exp_f32 {v(gT)}, {v(gT)}"); e(f"v_exp_f32 {v(gT+1)}, {v(gT+1)}")
    e(f"v_mul_f32 {v(gT)}, {v(gT)}, {v(gD+1)}"); e(f"v_mul_f32 {v(gT+1)}, {v(gT+1)}, {v(gD+2)}")
    for m in (X1D, X2D, HM):
        e(f"v_add_f32_dpp {v(gT)}, {v(gT)}, {v(gT)} {m}"); e(f"v_add_f32_dpp {v(gT+1)}, {v(gT+1)}, {v(gT+1)} {m}")
    e(f"v_rcp_f32 {v(gT)}, {v(gT)}"); e(f"v_rcp_f32 {v(gT+1)}, {v(gT+1)}")
    for w in range(5): e(f"v_sub_f32 {v(gW+w)}, {v(mreg(w))}, {v(gT+2 if w == 0 else gT+3)}")
    for w in range(5): e(f"v_mul_f32 {v(gW+w)}, {s(sL2E)}, {v(gW+w)}")
    for w in range(5): e(f"v_exp_f32 {v(gW+w)}, {v(gW+w)}")
    for w in range(5): e(f"v_mul_f32 {v(gW+w)}, {v(gW+w)}, {v(gT if w == 0 else gT+1)}")
    e(f"v_lshlrev_b32 {v(gA)}, 4, v0")
    e(f"v_and_b32 {v(gA+4)}, 31, v0"); e(f"v_lshlrev_b32 {v(gA+4)}, 4, {v(gA+4)}")
    e(f"v_lshrrev_b32 {v(gA+5)}, 5, v0")
    e(f"s_lshl_b32 {s(sT0)}, {s(sHEAD)}, 14"); e(f"s_add_u32 {s(sT0)}, {s(sT0)}, {X2O}")
    e(f"s_lshl_b32 {s(sT1)}, {s(sJ)}, 9"); e(f"s_add_u32 {s(sT1)}, {s(sT1)}, {s(sT0)}")
    e(f"v_lshlrev_b32 {v(gA+1)}, 12, {v(gA+5)}"); e(f"v_add_u32 {v(gA+1)}, {v(gA+1)}, {v(gA+4)}")
    e(f"v_add_u32 {v(gA+1)}, {s(sT1)}, {v(gA+1)}")
    e(f"v_add_u32 {v(gA+2)}, 0x2000, {v(gA+1)}")
    e(f"s_lshl_b32 {s(sT1)}, {s(sBR)}, 13"); e(f"s_add_u32 {s(sT0)}, {s(sT0)}, {s(sT1)}")
    e(f"s_lshl_b32 {s(sT1)}, {s(sKH)}, 12"); e(f"s_add_u32 {s(sT0)}, {s(sT0)}, {s(sT1)}")
    e(f"v_lshlrev_b32 {v(gA+3)}, 9, {v(gA+5)}"); e(f"v_add_u32 {v(gA+3)}, {v(gA+3)}, {v(gA+4)}")
    e(f"v_add_u32 {v(gA+3)}, {s(sT0)}, {v(gA+3)}")
    e(f"v_and_b32 {v(gA+6)}, 3, {v(gRG)}"); e(f"v_mul_u32_u24 {v(gA+6)}, 6, {v(gA+6)}")
    e(f"v_lshlrev_b32 {v(gA+7)}, 5, {v(gC)}"); e(f"v_add_u32 {v(gA+6)}, {v(gA+6)}, {v(gA+7)}")
    lds_wait(3, "L_a_o")
    astamp()
    for w in range(5): e(f"ds_read_b96 {v(gT+4*w,3)}, {v(gA)} offset:{L_OP+1024*w}")
    e("s_waitcnt lgkmcnt(0)")
    PA, PB = gT + 20, gT + 24
    for t in range(3): e(f"v_mul_f32 {v(PA+t)}, {v(gW)}, {v(gT+t)}")
    for t in range(3): e(f"v_mul_f32 {v(PB+t)}, {v(gW+1)}, {v(gT+4+t)}")
    e(f"v_mov_b32 {v(PA+3)}, {v(gTag)}"); e(f"v_mov_b32 {v(PB+3)}, {v(gTag)}")
    e(f"buffer_store_dwordx4 {v(PA,4)}, {v(gA+1)}, {s(SRD_WS,4)}, 0 offen sc1")
    for w in range(2, 5):
        for t in range(3): e(f"v_fma_f32 {v(PB+t)}, {v(gW+w)}, {v(gT+4*w+t)}, {v(PB+t)}")
    e(f"buffer_store_dwordx4 {v(PB,4)}, {v(gA+2)}, {s(SRD_WS,4)}, 0 offen sc1")
    loads = [f"buffer_load_dwordx4 {v(gD+4*i,4)}, {v(gA+3)}, {s(SRD_WS,4)}, 0 offen offset:{1024*i} sc1" for i in range(4)]
    poll("L_a_x2o", loads, [tagchk(gD + 4 * i + 3) for i in range(4)])
    astamp()
    for t in range(3):
        e(f"v_add_f32 {v(gD+t)}, {v(gD+t)}, {v(gD+4+t)}"); e(f"v_add_f32 {v(gD+8+t)}, {v(gD+8+t)}, {v(gD+12+t)}")
    for t in range(3): e(f"v_add_f32 {v(gD+t)}, {v(gD+t)}, {v(gD+8+t)}")
    for t in range(3): e(f"v_mov_b32 {v(gD+4+t)}, {v(gD+t)}")
    for t in range(3): e(f"v_permlane32_swap_b32 {v(gD+t)}, {v(gD+4+t)}")
    for t in range(3): e(f"v_add_f32 {v(gD+t)}, {v(gD+t)}, {v(gD+4+t)}")
    e(f"v_cvt_pk_bf16_f32 {v(gT)}, {v(gD)}, {v(gD+1)}"); e(f"v_cvt_pk_bf16_f32 {v(gT+1)}, {v(gD+2)}, {v(gD+2)}")
    e("s_mov_b32 exec_hi, 0")
    e(f"ds_write_b16 {v(gA+6)}, {v(gT)} offset:{L_O}")
    e(f"ds_write_b16_d16_hi {v(gA+6)}, {v(gT)} offset:{L_O+2}")
    e(f"ds_write_b16 {v(gA+6)}, {v(gT+1)} offset:{L_O+4}")
    e("s_mov_b64 exec, -1")
    e("s_waitcnt lgkmcnt(0)")
    e("s_barrier")
    astamp()
    e(f"s_lshr_b32 {s(sT0)}, s2, 6"); e(f"s_lshl_b32 {s(sT0)}, {s(sT0)}, 3"); e(f"s_add_u32 {s(sT0)}, {s(sT0)}, {s(sJ)}")
    e(f"s_cmp_ge_u32 {s(sT0)}, 20"); e("s_cbranch_scc1 L_a_done")
    e(f"s_and_b32 {s(sT1)}, {s(sHEAD)}, 7")
    e(f"s_lshl_b32 {s(sT0)}, {s(sT0)}, 5"); e(f"s_lshl_b32 {s(sT1)}, {s(sT1)}, 2"); e(f"s_add_u32 {s(sT0)}, {s(sT0)}, {s(sT1)}")
    e(f"s_lshl_b32 {s(sT1)}, {s(sT0)}, 2"); e(f"s_add_u32 {s(sT1)}, {s(sT1)}, {X3}")
    e(f"v_mul_u32_u24 {v(gA)}, 2560, v0"); e(f"v_add_u32 {v(gA)}, {s(sT1)}, {v(gA)}")
    e(f"v_add_u32 {v(gA+1)}, {64*2560}, {v(gA)}")
    e(f"s_lshl_b32 {s(sT0)}, {s(sT0)}, 1")
    e(f"v_lshrrev_b32 {v(gA+2)}, 4, v0"); e(f"v_lshlrev_b32 {v(gA+2)}, 2, {v(gA+2)}"); e(f"v_add_u32 {v(gA+2)}, {s(sT0)}, {v(gA+2)}")
    e(f"v_cmp_gt_u32 vcc, 32, v0"); e(f"v_cndmask_b32 {v(gA+3)}, {v(gG1)}, {v(gG)}, vcc")
    e("s_mov_b32 s80, 0x0c0c0400"); e("s_mov_b32 s82, 0x04000c0c")

    def bytechk(b):
        def f():
            e(f"v_perm_b32 {v(gT)}, {v(b+1)}, {v(b)}, s80"); e(f"v_perm_b32 {v(gT+1)}, {v(b+3)}, {v(b+2)}, s82")
            e(f"v_or_b32 {v(gT)}, {v(gT)}, {v(gT+1)}"); e(f"v_cmp_eq_u32 vcc, {v(gT)}, {v(gTag)}")
        return f
    loads = [f"buffer_load_dwordx4 {v(gD+4*i,4)}, {v(gA+i)}, {s(SRD_WS,4)}, 0 offen sc1" for i in range(2)]
    poll("L_a_x3", loads, [bytechk(gD), bytechk(gD + 4)])
    astamp()
    for k in range(4): e(f"v_permlane32_swap_b32 {v(gD+k)}, {v(gD+4+k)}")
    for k in range(4): e(f"v_add_f32 {v(gD+k)}, {v(gD+k)}, {v(gD+4+k)}")
    for k in range(2): e(f"v_permlane16_swap_b32 {v(gD+k)}, {v(gD+k+2)}")
    for k in range(2): e(f"v_add_f32 {v(gD+k)}, {v(gD+k)}, {v(gD+k+2)}")
    for r in (8, 4, 2, 1):
        for k in range(2): e(f"v_add_f32_dpp {v(gD+k)}, {v(gD+k)}, {v(gD+k)} row_ror:{r} {DPP_FULL}")
    for k in range(2): e(f"v_cvt_pk_bf16_f32 {v(gD+k)}, 0, {v(gD+k)}")
    for k in range(2): e(f"v_mul_f32 {v(gD+k)}, {v(gA+3)}, {v(gD+k)}")
    for k in range(2): e(f"v_cvt_pk_bf16_f32 {v(gD+k)}, 0, {v(gD+k)}")
    for k in range(2): e(f"v_mov_b32 {v(gD+2+k)}, {v(gD+k)}")
    for k in range(2): e(f"v_permlane32_swap_b32 {v(gD+k)}, {v(gD+2+k)}")
    for k in range(2): e(f"v_add_f32 {v(gD+k)}, {v(gD+k)}, {v(gD+2+k)}")
    e(f"v_cvt_pk_bf16_f32 {v(gD)}, {v(gD)}, {v(gD+1)}")
    e("s_mov_b32 exec_lo, 0x00010001"); e("s_mov_b32 exec_hi, 0")
    e(f"buffer_store_dword {v(gD)}, {v(gA+2)}, {s(SRD_OUT,4)}, 0 offen")
    e("s_mov_b64 exec, -1")
    e("s_cmp_lg_u32 s2, 0"); e("s_cbranch_scc1 L_a_done")
    e(f"v_mov_b32 {v(gA+4)}, 0")
    e("s_mov_b64 exec, 1")
    e(f"buffer_store_dword {v(gTag)}, {v(gA+4)}, {s(SRD_WS,4)}, 0 offen sc1")
    e("s_mov_b64 exec, -1")
    e("L_a_done:")
    if debug:
        e("s_waitcnt vmcnt(0)")
        astamp()
        e("s_waitcnt lgkmcnt(0)")
        e(f"s_lshl_b32 {s(sT0)}, s2, 10"); e(f"s_add_u32 {s(sT0)}, {s(sT0)}, {STAMPS + 320}")
        e(f"s_mov_b32 {s(SRD_WS+2)}, 0x400000")
        e(f"v_mov_b32 v1, {s(sT0)}")
        e("s_mov_b64 exec, 1")
        e(f"v_mov_b32 v2, {s(sSTAMP)}"); e(f"v_mov_b32 v3, {s(sSTAMP+1)}")
        e(f"buffer_store_dwordx2 v[2:3], v1, {s(SRD_WS,4)}, 0 offen offset:0"); e("s_nop 1")
        for k in range(ast[0]):
            e(f"v_mov_b32 v2, {s(aST[k])}"); e(f"v_mov_b32 v3, {s(aST[k]+1)}")
            e(f"buffer_store_dwordx2 v[2:3], v1, {s(SRD_WS,4)}, 0 offen offset:{8*k+8}"); e("s_nop 1")
        e("s_waitcnt vmcnt(0)")
    e("L_end:")
    e("s_endpgm")
    e('.section .rodata,"a"'); e(".p2align 6"); e(f".amdhsa_kernel {KERNEL}")
    for x in ["next_free_vgpr 256", "next_free_sgpr 102", "accum_offset 256", "group_segment_fixed_size 0",
              "kernarg_size 112", "user_sgpr_count 2", "user_sgpr_kernarg_segment_ptr 1", "system_sgpr_workgroup_id_x 1"]:
        e("  .amdhsa_" + x)
    e(".end_amdhsa_kernel")
    return a.finish()


if __name__ == "__main__":
    import argparse
    ap = argparse.ArgumentParser()
    ap.add_argument("-o", default=f"cdna_kernels/{NAME}.s")
    ap.add_argument("--debug", action="store_true")
    ap.add_argument("--ne", type=int, default=17); ap.add_argument("--no", type=int, default=15)
    ap.add_argument("--R", type=int, default=12); ap.add_argument("--win", type=int, default=2)
    x = ap.parse_args()
    open(x.o, "w").write(gen(ne=x.ne, no=x.no, R=x.R, debug=x.debug, win=x.win))
    print("wrote", x.o)
```
